```python
import torch

def _softmax(x, axis=-1):
    return torch.softmax(x, dim=axis)
def _gelu(x):
    return torch.nn.functional.gelu(x, approximate="tanh")
def _silu(x):
    return torch.nn.functional.silu(x)
def _sigmoid(x):
    return torch.sigmoid(x)
def _layernorm(x, axis=-1, eps=1e-5):
    m = x.mean(dim=axis, keepdim=True)
    v = x.var(dim=axis, keepdim=True, unbiased=False)
    return (x - m) / torch.sqrt(v + eps)
def _scatter_add(tgt, idx, src, axis=0):
    return tgt.clone().index_add_(axis, idx, src)
def _segment_sum(src, seg, n):
    out = torch.zeros((n,) + src.shape[1:], dtype=src.dtype)
    return out.index_add_(0, seg, src)
def _pad(x, pw):
    flat = tuple(v for pair in reversed(pw) for v in pair)
    return torch.nn.functional.pad(x, flat)

kernel_name = 'standalone__kv_cache_quant_int4_int2_kv_with_per_channel_or_per_token_scales__sampling'

def setup_inputs():

    _w = (lambda a: (lambda t: t.to(torch.bfloat16) if t.is_floating_point() else t)(torch.as_tensor(a)))
    B = 16
    Sq = 16
    Skv = 4096
    Hq = 32
    Hkv = 4
    Dh = 128
    bits = 2
    G = 32
    if G <= 0 or G >= Skv:
        G = max(1, Skv // 2)
    Skv = (Skv // G) * G
    ngk = Skv // G
    qmax = (1 << bits) - 1
    return {
        "q": _w((lambda *s: torch.randn(*s, dtype=torch.bfloat16) * 3.2)(B, Hq, Sq, Dh)),
        "qk": _w(torch.randint(0, qmax + 1, (B, Hkv, Skv, Dh)).to(torch.int32)),
        "qv": _w(torch.randint(0, qmax + 1, (B, Hkv, Skv, Dh)).to(torch.int32)),
        "k_scales": _w(torch.abs((lambda *s: torch.randn(*s, dtype=torch.bfloat16) * 3.2)(B, Hkv, ngk, Dh)) * 0.05 + 0.02),
        "k_zeros": _w((lambda *s: torch.randn(*s, dtype=torch.bfloat16) * 3.2)(B, Hkv, ngk, Dh) + float(qmax) / 2.0),
        "v_scales": _w(torch.abs((lambda *s: torch.randn(*s, dtype=torch.bfloat16) * 0.05)(B, Hkv, Skv, 1)) * 0.05 + 0.02),
        "v_zeros": _w((lambda *s: torch.randn(*s, dtype=torch.bfloat16) * 0.05)(B, Hkv, Skv, 1) + float(qmax) / 2.0),
    }

def reference(q, qk, qv, k_scales, k_zeros, v_scales, v_zeros):
    B, Hq, Sq, Dh = q.shape
    Hkv, Skv = qk.shape[1], qk.shape[2]
    ngk = k_scales.shape[2]
    G = Skv // ngk
    ks = (lambda x, n, axis: torch.repeat_interleave(x, n, dim=axis))(k_scales, G, axis=2)
    kz = (lambda x, n, axis: torch.repeat_interleave(x, n, dim=axis))(k_zeros, G, axis=2)
    k = ((lambda x, dt: x.to(dt))(qk, q.dtype) - kz) * ks
    v = ((lambda x, dt: x.to(dt))(qv, q.dtype) - v_zeros) * v_scales
    rep = Hq // Hkv
    if rep > 1:
        k = (lambda x, n, axis: torch.repeat_interleave(x, n, dim=axis))(k, rep, axis=1)
        v = (lambda x, n, axis: torch.repeat_interleave(x, n, dim=axis))(v, rep, axis=1)
    scale = float(Dh) ** -0.5
    logits = torch.einsum("bhqd,bhkd->bhqk", q, k) * scale
    p = _softmax(logits, axis=-1)
    o = torch.einsum("bhqk,bhkd->bhqd", p, v)
    return o
```

```python
import argparse, itertools, sys
NAME = "standalone__kv_cache_quant_int4_int2_kv_with_per_channel_or_per_token_scales__sampling"
def gen(pw, pj, pt, D=8, idmap=0, ph=12):
    L=[]; e=L.append
    e(f"; @launch grid=(256,1,1) block=(256,1,1) lds=90000")
    e('.amdgcn_target "amdgcn-amd-amdhsa--gfx950"'); e(".text"); e(f".globl {NAME}_kernel"); e(".p2align 8")
    e(f".type {NAME}_kernel,@function"); e(f"{NAME}_kernel:")
    e("    s_cmp_ge_u32 s2, 256"); e("    s_cbranch_scc1 L_end")
    e("    s_load_dwordx4 s[16:19], s[0:1], 8"); e("    s_load_dwordx4 s[32:35], s[0:1], 64"); e("    s_memrealtime s[84:85]")
    e("    v_lshrrev_b32 v2, 6, v0")
    e("    v_and_b32 v4, 31, v0"); e("    v_bfe_u32 v5, v0, 5, 1"); e("    v_readfirstlane_b32 s74, v2")
    if idmap == 0:
        e("    s_and_b32 s4, s2, 63"); e("    s_lshr_b32 s5, s2, 6")
    else:
        e("    s_lshr_b32 s4, s2, 2"); e("    s_and_b32 s5, s2, 3")
    e("    v_lshlrev_b32 v1, 4, v4"); e(f"    v_lshl_add_u32 v1, v5, {ph}, v1")
    e("    v_bfe_u32 v6, v0, 6, 1"); e(f"    v_lshl_add_u32 v1, v6, {pw[0]}, v1")
    e("    v_bfe_u32 v6, v0, 7, 1"); e(f"    v_lshl_add_u32 v1, v6, {pw[1]}, v1")
    e("    s_and_b32 s6, s5, 1"); e(f"    s_lshl_b32 s6, s6, {pj[0]}"); e("    s_lshr_b32 s7, s5, 1"); e(f"    s_lshl_b32 s7, s7, {pj[1]}"); e("    s_add_u32 s6, s6, s7")
    e("    s_waitcnt lgkmcnt(0)"); e("    s_memrealtime s[86:87]")
    e("    s_lshl_b32 s3, s4, 21")
    for (dst, ptr) in ((36, 16), (40, 18)):
        e(f"    s_add_u32 s{dst}, s{ptr}, s3"); e(f"    s_addc_u32 s{dst+1}, s{ptr+1}, 0"); e(f"    s_and_b32 s{dst+1}, s{dst+1}, 0xffff")
        e(f"    s_mov_b32 s{dst+2}, 0x200000"); e(f"    s_mov_b32 s{dst+3}, 0x00020000")
    def toff(t):
        return sum(((t >> b) & 1) << pt[b] for b in range(4))
    for t in range(16):
        e(f"    s_add_u32 s{50+t}, s6, {toff(t)}")
    seq = [(t, k) for t in range(16) for k in range(16)]
    def ld(idx):
        t, k = seq[idx]
        R = 8 + 4 * (idx % D)
        srd = 40 if k >= 8 else 36
        e(f"    buffer_load_dwordx4 v[{R}:{R+3}], v1, s[{srd}:{srd+3}], s{50+t} offen offset:{(k&7)*512} nt")
    for idx in range(D): ld(idx)
    e("    s_memrealtime s[88:89]"); e("    v_mov_b32 v2, 0")
    e(f"    s_waitcnt vmcnt({D-1})"); e("    s_memrealtime s[90:91]")
    for idx in range(256):
        R = 8 + 4 * (idx % D)
        e(f"    s_waitcnt vmcnt({min(D-1, 255-idx)})")
        e(f"    v_or3_b32 v2, v{R}, v{R+3}, v2")
        if idx + D < 256: ld(idx + D)
    e("    s_memrealtime s[92:93]"); e("    s_barrier"); e("    s_memrealtime s[94:95]"); e("    s_waitcnt lgkmcnt(0)")
    e("    s_cmp_lg_u32 s74, 0"); e("    s_cbranch_scc1 L_end")
    e("    s_lshl_b32 s79, s2, 6"); e("    s_add_u32 s79, s79, 0x4000000"); e("    v_mov_b32 v3, s79"); e("    s_mov_b64 exec, 1")
    for k in range(12): e(f"    v_mov_b32 v{8+k}, s{84+k}")
    e("    s_getreg_b32 s79, hwreg(HW_REG_XCC_ID)"); e("    v_mov_b32 v20, s79"); e("    v_mov_b32 v21, v2")
    for k in range(3): e(f"    global_store_dwordx4 v3, v[{8+4*k}:{8+4*k+3}], s[34:35] offset:{16*k}")
    e("    global_store_dwordx2 v3, v[20:21], s[34:35] offset:48")
    e("L_end:"); e("    s_endpgm")
    e('.section .rodata,"a"'); e(".p2align 6"); e(f".amdhsa_kernel {NAME}_kernel")
    e("  .amdhsa_next_free_vgpr 80"); e("  .amdhsa_next_free_sgpr 102"); e("  .amdhsa_accum_offset 80")
    e("  .amdhsa_group_segment_fixed_size 0"); e("  .amdhsa_kernarg_size 80"); e("  .amdhsa_user_sgpr_count 2")
    e("  .amdhsa_user_sgpr_kernarg_segment_ptr 1"); e("  .amdhsa_system_sgpr_workgroup_id_x 1"); e(".end_amdhsa_kernel")
    return "\n".join(L)+"\n"
if __name__ == "__main__":
    names = []
    bits = list(range(12, 17))
    for ph in bits:
        r1 = [b for b in bits if b != ph]
        for pw in itertools.combinations(r1, 2):
            pj = [b for b in r1 if b not in pw]
            nm = "s_h%dw%d%dj%d%d.s" % (ph-12, pw[0]-12, pw[1]-12, pj[0]-12, pj[1]-12)
            open(nm, "w").write(gen(list(pw), pj, [17,18,19,20], ph=ph))
            names.append(nm)
    print(" ".join(names))
```
